```python
import torch

def _softmax(x, axis=-1):
    return torch.softmax(x, dim=axis)
def _gelu(x):
    return torch.nn.functional.gelu(x, approximate="tanh")
def _silu(x):
    return torch.nn.functional.silu(x)
def _sigmoid(x):
    return torch.sigmoid(x)
def _layernorm(x, axis=-1, eps=1e-5):
    m = x.mean(dim=axis, keepdim=True)
    v = x.var(dim=axis, keepdim=True, unbiased=False)
    return (x - m) / torch.sqrt(v + eps)
def _scatter_add(tgt, idx, src, axis=0):
    return tgt.clone().index_add_(axis, idx, src)
def _segment_sum(src, seg, n):
    out = torch.zeros((n,) + src.shape[1:], dtype=src.dtype)
    return out.index_add_(0, seg, src)
def _pad(x, pw):
    flat = tuple(v for pair in reversed(pw) for v in pair)
    return torch.nn.functional.pad(x, flat)

kernel_name = 'standalone__detection_seg_fpn_lateral__vision'

def setup_inputs():

    _w = (lambda a: (lambda t: t.to(torch.bfloat16) if t.is_floating_point() else t)(torch.as_tensor(a)))
    H = W = (224 // 2) * 2
    C = 192
    k = 3
    return {
        "c_fine": _w((lambda *s: torch.randn(*s, dtype=torch.bfloat16) * 0.05)(1, H, W, C)),
        "p_coarse": _w((lambda *s: torch.randn(*s, dtype=torch.bfloat16) * 0.05)(1, H // 2, W // 2, C)),
        "w_lat": _w((lambda *s: torch.randn(*s, dtype=torch.bfloat16) * 0.05)(C, C)),
        "w_out": _w((lambda *s: torch.randn(*s, dtype=torch.bfloat16) * 0.05)(k, k, C, C)),
    }

def reference(c_fine, p_coarse, w_lat, w_out):
    B, H, W, C = c_fine.shape
    k = 3
    lat = torch.einsum("bhwc,cd->bhwd", c_fine, w_lat)
    up = (lambda x, n, axis: torch.repeat_interleave(x, n, dim=axis))((lambda x, n, axis: torch.repeat_interleave(x, n, dim=axis))(p_coarse, 2, axis=1), 2, axis=2)
    m = lat + up
    pad = k // 2
    mp = _pad(m, ((0, 0), (pad, pad), (pad, pad), (0, 0)))
    o = None
    for di in range(k):
        for dj in range(k):
            t = torch.einsum("bhwc,cd->bhwd", mp[:, di:di + H, dj:dj + W, :], w_out[di, dj])
            o = t if o is None else o + t
    return o
```

```python
class Tok:
    __slots__ = ("q", "idx", "t")
    def __init__(s, q, idx, t): s.q, s.idx, s.t = q, idx, t

def regs(kind, base, n=1):
    return [f"{kind}{base+i}" for i in range(n)]

def rt(kind, base, n=1):
    return f"{kind}{base}" if n == 1 else f"{kind}[{base}:{base+n-1}]"

class Asm:
    LGKM_SAFE = 220
    def __init__(s):
        s.L = []
        s.ws = 0
        s.t = 0
        s.last_mfma_t = -100
        s.issued = {"lgkm": [], "vm": []}
        s.done = {"lgkm": 0, "vm": 0}
        s.pend = {}
        s.lastw = {}
        s.lastc = {}
        s.laststore = {}
        s.nwait = 0
        s.nnop = 0
        s.count = {}

    def raw(s, text):
        s.L.append(text)

    def comment(s, text):
        s.L.append("; " + text)

    def _adv(s, kind, n=1):
        s.ws += n
        if kind == "mfma":
            s.t = max(s.t, s.last_mfma_t + 16)
            s.last_mfma_t = s.t
            s.t += 8
        else:
            s.t += 4 * n

    def nop(s, n):
        while n > 0:
            k = min(n, 16)
            s.L.append(f"s_nop {k-1}")
            s._adv("other", k)
            s.nnop += 1
            n -= k

    def wait(s, toks=(), lgkm0=False, vm0=False):
        need = {"lgkm": -1, "vm": -1}
        for tk in toks:
            if tk is None: continue
            if tk.idx >= s.done[tk.q]:
                need[tk.q] = max(need[tk.q], tk.idx)
        if lgkm0 and s.done["lgkm"] < len(s.issued["lgkm"]): need["lgkm"] = len(s.issued["lgkm"]) - 1
        if vm0 and s.done["vm"] < len(s.issued["vm"]): need["vm"] = len(s.issued["vm"]) - 1
        parts = []
        if need["vm"] >= 0:
            n = len(s.issued["vm"]) - 1 - need["vm"]
            n = min(n, 63)
            parts.append(f"vmcnt({n})")
            s.done["vm"] = len(s.issued["vm"]) - n
        if need["lgkm"] >= 0:
            k = need["lgkm"]
            iss = s.issued["lgkm"]
            while k + 1 < len(iss) and iss[k + 1].t <= s.t - s.LGKM_SAFE: k += 1
            n = len(iss) - 1 - k
            n = min(n, 15)
            parts.append(f"lgkmcnt({n})")
            s.done["lgkm"] = len(iss) - n
        if parts:
            s.L.append("s_waitcnt " + " ".join(parts))
            s._adv("other")
            s.nwait += 1

    def emit(s, text, rd=(), wr=(), kind="valu", ctuple=None, dtuple=None, q=None, wide_store=(), load_dst=False):
        toks = [s.pend[r] for r in list(rd) + list(wr) if r in s.pend]
        if toks: s.wait(toks)
        for r in list(rd) + list(wr):
            if r in s.pend and s.pend[r].idx < s.done[s.pend[r].q]: del s.pend[r]
        need = 0
        def req(prod_ws, n):
            nonlocal need
            have = s.ws - prod_ws - 1
            if have < n: need = max(need, n - have)
        for r in rd:
            lw = s.lastw.get(r)
            if lw:
                pws, pk, ptuple = lw
                if kind == "mfma":
                    if pk == "valu": req(pws, 2)
                    elif pk == "mfma":
                        if ctuple is not None and r in ctuple and ptuple == ctuple: pass
                        else: req(pws, 8)
                elif kind in ("valu", "ds", "vmem"):
                    if pk == "mfma": req(pws, 8)
                    if pk == "valu" and r[0] == "s" or (pk == "valu" and r == "vcc"):
                        req(pws, 5 if kind == "vmem" else 2)
                    if pk == "valu" and text.startswith("v_readfirstlane"): req(pws, 1)
                    if pk == "salu" and r == "m0": req(pws, 1)
                elif kind == "salu":
                    if pk == "valu": req(pws, 1)
        for r in wr:
            lw = s.lastw.get(r)
            if lw and lw[1] == "mfma" and kind in ("valu", "ds", "vmem"): req(lw[0], 8)
            if kind == "valu" and r in s.lastc: req(s.lastc[r], 3)
            if r in s.laststore: req(s.laststore[r], 2)
        if need: s.nop(need)
        s.L.append(text)
        op = text.split()[0]
        s.count[op] = s.count.get(op, 0) + 1
        myws = s.ws
        tok = None
        if q:
            tok = Tok(q, len(s.issued[q]), s.t)
            s.issued[q].append(tok)
            if load_dst:
                for r in wr: s.pend[r] = tok
        for r in wr:
            if load_dst: s.lastw.pop(r, None)
            else: s.lastw[r] = (myws, kind, dtuple)
        if ctuple is not None:
            for r in ctuple: s.lastc[r] = myws
        for r in wide_store: s.laststore[r] = myws
        s._adv(kind)
        return tok

    def salu(s, text, rd=(), wr=()): return s.emit(text, rd, wr, "salu")
    def valu(s, text, rd=(), wr=()): return s.emit(text, rd, wr, "valu")

    def mfma(s, d, a, b, c=None):
        D = tuple(regs(d[0], d[1], 4)); A_ = regs(a[0], a[1], 4); B_ = regs(b[0], b[1], 4)
        if c is None:
            s.emit(f"v_mfma_f32_16x16x32_bf16 {rt(d[0],d[1],4)}, {rt(a[0],a[1],4)}, {rt(b[0],b[1],4)}, 0",
                   A_ + B_, D, "mfma", dtuple=D)
        else:
            C = tuple(regs(c[0], c[1], 4))
            s.emit(f"v_mfma_f32_16x16x32_bf16 {rt(d[0],d[1],4)}, {rt(a[0],a[1],4)}, {rt(b[0],b[1],4)}, {rt(c[0],c[1],4)}",
                   A_ + B_ + list(C), D, "mfma", ctuple=C, dtuple=D)

    def ds_read_b128(s, d, vaddr, off):
        assert 0 <= off < 65536
        return s.emit(f"ds_read_b128 {rt(d[0],d[1],4)}, v{vaddr} offset:{off}", [f"v{vaddr}"], regs(d[0], d[1], 4), "ds", q="lgkm", load_dst=True)
    def ds_read_tr(s, d, vaddr, off):
        assert 0 <= off < 65536
        return s.emit(f"ds_read_b64_tr_b16 {rt(d[0],d[1],2)}, v{vaddr} offset:{off}", [f"v{vaddr}"], regs(d[0], d[1], 2), "ds", q="lgkm", load_dst=True)
    def ds_write_b64(s, vaddr, src, off):
        assert 0 <= off < 65536
        return s.emit(f"ds_write_b64 v{vaddr}, {rt(src[0],src[1],2)} offset:{off}", [f"v{vaddr}"] + regs(src[0], src[1], 2), [], "ds", q="lgkm")
    def dma(s, vaddr, srd, soff, off=0, flags=""):
        o = f" offset:{off}" if off else ""
        return s.emit(f"buffer_load_dwordx4 v{vaddr}, s[{srd}:{srd+3}], {soff} offen{o}{flags} lds",
                      [f"v{vaddr}", "m0"] + regs("s", srd, 4) + ([soff] if str(soff).startswith("s") else []), [], "vmem", q="vm")
    def bload(s, n, d, vaddr, srd, soff, off=0, flags=""):
        nm = {1: "dword", 2: "dwordx2", 3: "dwordx3", 4: "dwordx4"}[n]
        o = f" offset:{off}" if off else ""
        return s.emit(f"buffer_load_{nm} {rt(d[0],d[1],n)}, v{vaddr}, s[{srd}:{srd+3}], {soff} offen{o}{flags}",
                      [f"v{vaddr}"] + regs("s", srd, 4) + ([soff] if str(soff).startswith("s") else []), regs(d[0], d[1], n), "vmem", q="vm", load_dst=True)
    def bstore(s, n, src, vaddr, srd, soff, off=0, flags=""):
        nm = {1: "dword", 2: "dwordx2", 3: "dwordx3", 4: "dwordx4"}[n]
        o = f" offset:{off}" if off else ""
        return s.emit(f"buffer_store_{nm} {rt(src[0],src[1],n)}, v{vaddr}, s[{srd}:{srd+3}], {soff} offen{o}{flags}",
                      [f"v{vaddr}"] + regs("s", srd, 4) + regs(src[0], src[1], n) + ([soff] if str(soff).startswith("s") else []), [], "vmem", q="vm",
                      wide_store=regs(src[0], src[1], n))
    def barrier(s):
        s.L.append("s_barrier"); s._adv("other")
    def text(s): return "\n".join(s.L) + "\n"
```

```python
import sys
from asmlib import *

NAME = "standalone__detection_seg_fpn_lateral__vision_kernel"
RP = 6624
PP = 400
XREG = 16 * RP
VREG = 7 * RP
WB = 3072
NWB = 4
LDS = XREG + 4 * NWB * WB
OOB = 0x40000000
MAT = 73728

HEADER = """; Kernarg layout for this problem (56 bytes, ptrs only, base s[0:1]):
;   offset   0: d_in[0] c_fine  shape=(1, 224, 224, 192) dtype=bfloat16
;   offset   8: d_in[1] p_coarse  shape=(1, 112, 112, 192) dtype=bfloat16
;   offset  16: d_in[2] w_lat  shape=(192, 192) dtype=bfloat16
;   offset  24: d_in[3] w_out  shape=(3, 3, 192, 192) dtype=bfloat16
;   offset  32: d_out     shape=(1, 224, 224, 192) dtype=bfloat16 (2 bytes/elem)
;   offset  40: d_debug   256 bytes
;   offset  48: d_ws      workspace
; @launch grid=(256,1,1) block=(256,1,1) lds=%d
""" % LDS

sX, sP, sWl, sWo, sO, sD, sWs = 20, 24, 28, 32, 36, 40, 44
sW, sY0, sX0, sSTG, sT0, sT1, sT2, sT3, sOB0, sOB1, sSO = 48, 49, 50, 51, 52, 53, 54, 55, 56, 57, 58
sROW = 60
sUP = 64
vL, vI, vKG, vPI, vCM = 1, 2, 3, 4, 5
vXD = 6
vWD = 13
vTR = 16
vXF = 17
vVF = 19
vVW = 26
vUP = 28
vG = 29
vGD = 30
vSIG = 31
vACC = 32
vOUT = 200
vT = 208
aVP = 0
aWL = 128
aXF = 200
aVF = 128
aWF = 200

def accA(mb, j): return ("v", vACC + (mb * 3 + j) * 4)
def accB(mb, j): return ("v", vACC + 84 + (mb * 3 + j) * 4)
def mreg(r): return vACC + (6 + (r % 8)) * 12
def upreg(k): return vACC + k * 6

def gen(opt=None):
    opt = opt or {}
    a = Asm()
    a.raw(HEADER.rstrip())
    a.raw('.amdgcn_target "amdgcn-amd-amdhsa--gfx950"')
    a.raw(".text"); a.raw(f".globl {NAME}"); a.raw(".p2align 8"); a.raw(f".type {NAME},@function"); a.raw(f"{NAME}:")
    S, V = a.salu, a.valu
    S("s_cmp_ge_u32 s2, 256")
    a.raw("s_cbranch_scc1 Lend")
    a.raw("s_load_dwordx8 s[4:11], s[0:1], 0")
    a.raw("s_load_dwordx4 s[12:15], s[0:1], 32")
    a.raw("s_load_dwordx2 s[16:17], s[0:1], 48")
    S(f"s_and_b32 s{sT0}, s2, 7"); S(f"s_lshr_b32 s{sT1}, s2, 3")
    S(f"s_lshr_b32 s{sT2}, s{sT0}, 1"); S(f"s_lshl_b32 s{sT2}, s{sT2}, 2"); S(f"s_lshr_b32 s{sT3}, s{sT1}, 3")
    S(f"s_add_u32 s{sT2}, s{sT2}, s{sT3}"); S(f"s_mul_i32 s{sY0}, s{sT2}, 14")
    S(f"s_and_b32 s{sT2}, s{sT0}, 1"); S(f"s_lshl_b32 s{sT2}, s{sT2}, 3"); S(f"s_and_b32 s{sT3}, s{sT1}, 7")
    S(f"s_add_u32 s{sT2}, s{sT2}, s{sT3}"); S(f"s_mul_i32 s{sX0}, s{sT2}, 14")
    V(f"v_lshrrev_b32 v{vT}, 6, v0", ["v0"], [f"v{vT}"])
    V(f"v_and_b32 v{vL}, 63, v0", ["v0"], [f"v{vL}"])
    V(f"v_readfirstlane_b32 s{sW}, v{vT}", [f"v{vT}"], [f"s{sW}"])
    V(f"v_and_b32 v{vI}, 15, v{vL}", [f"v{vL}"], [f"v{vI}"])
    V(f"v_lshrrev_b32 v{vKG}, 4, v{vL}", [f"v{vL}"], [f"v{vKG}"])
    t0, t1, t2, t3, t4 = vT, vT + 1, vT + 2, vT + 3, vT + 4
    def vv(text, rd, wr): V(text, [f"v{x}" if isinstance(x, int) else x for x in rd], [f"v{x}" if isinstance(x, int) else x for x in wr])
    vv(f"v_lshlrev_b32 v{t0}, 1, v{vI}", [vI], [t0])
    vv(f"v_subrev_u32 v{vPI}, 7, v{t0}", [t0], [vPI])
    vv(f"v_subrev_u32 v{t1}, 16, v{t0}", [t0], [t1])
    vv(f"v_cmp_gt_u32 vcc, 4, v{vI}", [vI], ["vcc"])
    vv(f"v_cndmask_b32 v{vPI}, v{vPI}, v{t0}, vcc", [vPI, t0, "vcc"], [vPI])
    vv(f"v_cmp_lt_u32 vcc, 11, v{vI}", [vI], ["vcc"])
    vv(f"v_cndmask_b32 v{vPI}, v{vPI}, v{t1}, vcc", [vPI, t1, "vcc"], [vPI])
    vv(f"v_and_b32 v{t0}, 1, v{vKG}", [vKG], [t0]); vv(f"v_lshlrev_b32 v{t0}, 5, v{t0}", [t0], [t0])
    vv(f"v_lshrrev_b32 v{t1}, 1, v{vKG}", [vKG], [t1]); vv(f"v_lshl_add_u32 v{vCM}, v{t1}, 4, v{t0}", [t1, t0], [vCM])
    S(f"s_mul_i32 s{sSTG}, s{sW}, {NWB*WB}", [f"s{sW}"]); S(f"s_add_u32 s{sSTG}, s{sSTG}, {XREG}")
    S(f"s_mul_i32 s{sT0}, s{sW}, 96")
    for i in range(3):
        vv(f"v_add_u32 v{t0}, {64*i}, v{vL}", [vL], [t0])
        vv(f"v_mul_u32_u24 v{t1}, 10923, v{t0}", [t0], [t1]); vv(f"v_lshrrev_b32 v{t1}, 16, v{t1}", [t1], [t1])
        vv(f"v_mul_u32_u24 v{t2}, 6, v{t1}", [t1], [t2]); vv(f"v_sub_u32 v{t2}, v{t0}, v{t2}", [t0, t2], [t2])
        vv(f"v_and_b32 v{t3}, 3, v{t1}", [t1], [t3])
        vv(f"v_bfe_u32 v{t4}, v{t1}, 2, 1", [t1], [t4]); vv(f"v_lshl_add_u32 v{t3}, v{t4}, 4, v{t3}", [t4, t3], [t3])
        vv(f"v_lshrrev_b32 v{t4}, 3, v{t1}", [t1], [t4]); vv(f"v_lshl_add_u32 v{t3}, v{t4}, 2, v{t3}", [t4, t3], [t3])
        vv(f"v_mul_u32_u24 v{t3}, 384, v{t3}", [t3], [t3])
        vv(f"v_lshl_add_u32 v{t3}, v{t2}, 4, v{t3}", [t2, t3], [t3])
        vv(f"v_add_u32 v{t3}, s{sT0}, v{t3}", [t3, f"s{sT0}"], [t3])
        vv(f"v_subrev_u32 v{vWD+i}, {1024*i}, v{t3}", [t3], [vWD + i])
    vv(f"v_lshrrev_b32 v{t0}, 2, v{vI}", [vI], [t0])
    vv(f"v_and_b32 v{t1}, 1, v{vKG}", [vKG], [t1]); vv(f"v_lshl_add_u32 v{t0}, v{t1}, 2, v{t0}", [t1, t0], [t0])
    vv(f"v_lshrrev_b32 v{t1}, 1, v{vKG}", [vKG], [t1]); vv(f"v_lshl_add_u32 v{t0}, v{t1}, 4, v{t0}", [t1, t0], [t0])
    vv(f"v_mul_u32_u24 v{t0}, 96, v{t0}", [t0], [t0])
    vv(f"v_and_b32 v{t1}, 3, v{vL}", [vL], [t1]); vv(f"v_mul_u32_u24 v{t1}, 24, v{t1}", [t1], [t1])
    vv(f"v_add3_u32 v{vTR}, v{t0}, v{t1}, s{sSTG}", [t0, t1, f"s{sSTG}"], [vTR])
    vTRB = vT + 5
    S(f"s_add_u32 s{sT1}, s{sW}, 12"); S(f"s_mul_i32 s{sT1}, s{sT1}, {RP}")
    vv(f"v_add3_u32 v{vTRB}, v{t0}, v{t1}, s{sT1}", [t0, t1, f"s{sT1}"], [vTRB])
    S(f"s_sub_u32 s{sT2}, s{sX0}, 1")
    for j in range(7):
        vv(f"v_add_u32 v{t0}, {64*j}, v{vL}", [vL], [t0])
        vv(f"v_mul_u32_u24 v{t1}, 2622, v{t0}", [t0], [t1]); vv(f"v_lshrrev_b32 v{t1}, 16, v{t1}", [t1], [t1])
        vv(f"v_mul_u32_u24 v{t2}, 25, v{t1}", [t1], [t2]); vv(f"v_sub_u32 v{t2}, v{t0}, v{t2}", [t0, t2], [t2])
        vv(f"v_add_u32 v{t1}, s{sT2}, v{t1}", [t1, f"s{sT2}"], [t1])
        vv(f"v_mul_u32_u24 v{t3}, 384, v{t1}", [t1], [t3])
        vv(f"v_lshl_add_u32 v{t3}, v{t2}, 4, v{t3}", [t2, t3], [t3])
        vv(f"v_mov_b32 v{t4}, {OOB}", [], [t4])
        vv(f"v_cmp_gt_u32 vcc, 224, v{t1}", [t1], ["vcc"])
        vv(f"v_cndmask_b32 v{t3}, v{t4}, v{t3}, vcc", [t4, t3, "vcc"], [t3])
        vv(f"v_cmp_gt_u32 vcc, 24, v{t2}", [t2], ["vcc"])
        vv(f"v_cndmask_b32 v{vXD+j}, v{t4}, v{t3}, vcc", [t4, t3, "vcc"], [vXD + j])
    for g in range(4):
        S(f"s_add_u32 s{sT2}, s{sY0}, s{sW}"); S(f"s_add_u32 s{sT2}, s{sT2}, {4*g-1}")
        S(f"s_mul_i32 s{sROW+g}, s{sT2}, 86016")
        S(f"s_cmp_lt_u32 s{sT2}, 224"); S(f"s_cselect_b32 s{sROW+g}, s{sROW+g}, {OOB}")
    S(f"s_lshr_b32 s{sT3}, s{sY0}, 1")
    for k in range(9):
        S(f"s_add_u32 s{sT2}, s{sT3}, {k-1}")
        S(f"s_mul_i32 s{sUP+k}, s{sT2}, 43008")
        S(f"s_cmp_lt_u32 s{sT2}, 112"); S(f"s_cselect_b32 s{sUP+k}, s{sUP+k}, {OOB}")
    S(f"s_sub_u32 s{sT2}, s{sX0}, 1")
    vv(f"v_add_u32 v{t0}, s{sT2}, v{vPI}", [vPI, f"s{sT2}"], [t0])
    vv(f"v_ashrrev_i32 v{t0}, 1, v{t0}", [t0], [t0])
    vv(f"v_mul_u32_u24 v{t1}, 384, v{t0}", [t0], [t1])
    vv(f"v_mul_u32_u24 v{t2}, 24, v{vKG}", [vKG], [t2])
    vv(f"v_add3_u32 v{t1}, v{t1}, v{t2}, s{sT0}", [t1, t2, f"s{sT0}"], [t1])
    vv(f"v_mov_b32 v{t4}, {OOB}", [], [t4])
    vv(f"v_cmp_gt_u32 vcc, 112, v{t0}", [t0], ["vcc"])
    vv(f"v_cndmask_b32 v{vUP}, v{t4}, v{t1}, vcc", [t4, t1, "vcc"], [vUP])
    a.raw("s_waitcnt lgkmcnt(0)")
    def srd(d, p, n):
        S(f"s_mov_b32 s{d}, s{p}"); S(f"s_mov_b32 s{d+1}, s{p+1}"); S(f"s_mov_b32 s{d+2}, {n}"); S(f"s_mov_b32 s{d+3}, 0x00020000")
    srd(sWl, 8, MAT); srd(sX, 4, 19267584); srd(sP, 6, 4816896); srd(sWo, 10, 9 * MAT)
    srd(sO, 12, 19267584); srd(sD, 14, 256); srd(sWs, 16, 6 * MAT)

    def wdma(srd_, soff_val, ldsbase_sreg, ldsoff, flags=""):
        S(f"s_add_u32 m0, s{ldsbase_sreg}, {ldsoff}", [f"s{ldsbase_sreg}"], ["m0"])
        S(f"s_mov_b32 s{sSO}, {soff_val}", [], [f"s{sSO}"])
        tk = None
        for i in range(3): tk = a.dma(vWD + i, srd_, f"s{sSO}", 1024 * i, flags)
        return tk
    tWl = []
    for ks in range(6):
        if ks < 4: tWl.append(wdma(sWl, ks * 12288, sSTG, ks * WB))
        else: tWl.append(wdma(sWl, ks * 12288, sT1, (ks - 4) * WB))
    S(f"s_mul_i32 s{sT3}, s{sW}, {RP}")
    def xrow(g):
        tk = None
        for j in range(7):
            S(f"s_add_u32 m0, s{sT3}, {4*g*RP + 1024*j}", [], ["m0"])
            if j == 6: S("s_mov_b64 exec, 0xffff")
            tk = a.dma(vXD + j, sX, f"s{sROW+g}")
            if j == 6: S("s_mov_b64 exec, -1")
        return tk
    def upload(k):
        a.bload(4, ("v", upreg(k)), vUP, sP, f"s{sUP+k}")
        a.bload(2, ("v", upreg(k) + 4), vUP, sP, f"s{sUP+k}", 16)
    tXg = [None] * 4
    tXg[0] = xrow(0)
    for k in range(3): upload(k)
    S(f"s_lshl_b32 s{sT2}, s2, 2"); S(f"s_add_u32 s{sT2}, s{sT2}, s{sW}"); S(f"s_mul_i32 s{sT2}, s{sT2}, 14")
    vv(f"v_add_u32 v{t0}, s{sT2}, v{vL}", [vL, f"s{sT2}"], [t0])
    vv(f"v_lshlrev_b32 v{t1}, 4, v{t0}", [t0], [t1])
    vv(f"v_mov_b32 v{t4}, {OOB}", [], [t4])
    vv(f"v_cmp_gt_u32 vcc, 14, v{vL}", [vL], ["vcc"])
    vv(f"v_cndmask_b32 v{t1}, v{t4}, v{t1}, vcc", [t4, t1, "vcc"], [t1])
    vv(f"v_cmp_gt_u32 vcc, 13824, v{t0}", [t0], ["vcc"])
    vv(f"v_cndmask_b32 v{vG}, v{t4}, v{t1}, vcc", [t4, t1, "vcc"], [vG])
    vv(f"v_cmp_eq_u32 vcc, 0, v0", ["v0"], ["vcc"])
    vv(f"v_cndmask_b32 v{vSIG}, v{t4}, 0, vcc" if False else f"v_cndmask_b32 v{vSIG}, v{t4}, v0, vcc", [t4, "v0", "vcc"], [vSIG])
    gR = vT + 8
    for di in range(3):
        S(f"s_mov_b32 s{sSO}, {di*3*MAT}", [], [f"s{sSO}"])
        a.bload(4, ("v", gR + 4 * di), vG, sWo, f"s{sSO}")
    tXg[1] = xrow(1)
    for k in range(3, 5): upload(k)
    tXg[2] = xrow(2)
    for k in range(5, 9): upload(k)
    vv(f"v_mul_u32_u24 v{t0}, {PP}, v{vPI}", [vPI], [t0])
    vv(f"v_add_u32 v{vXF}, v{t0}, v{vCM}", [t0, vCM], [vXF])
    vv(f"v_add_u32 v{vXF+1}, {8*RP}, v{vXF}", [vXF], [vXF + 1])
    vv(f"v_mul_u32_u24 v{t2}, 24, v{vKG}", [vKG], [t2])
    vv(f"v_add3_u32 v{vVW}, v{t0}, v{t2}, s{sT0}", [t0, t2, f"s{sT0}"], [vVW])
    vv(f"v_add_u32 v{vVW+1}, {VREG}, v{vVW}", [vVW], [vVW + 1])
    vv(f"v_add_u32 v{t2}, s{sT0}, v{t2}", [t2, f"s{sT0}"], [t2])
    for mb in range(7):
        vv(f"v_add_u32 v{t0}, {16*mb}, v{vPI}", [vPI], [t0])
        vv(f"v_mul_u32_u24 v{t1}, 4682, v{t0}", [t0], [t1]); vv(f"v_lshrrev_b32 v{t1}, 16, v{t1}", [t1], [t1])
        vv(f"v_mul_u32_u24 v{t3}, 14, v{t1}", [t1], [t3]); vv(f"v_sub_u32 v{t3}, v{t0}, v{t3}", [t0, t3], [t3])
        vv(f"v_mul_u32_u24 v{t4}, {RP}, v{t1}", [t1], [t4])
        vv(f"v_mul_u32_u24 v{vVF+mb}, {PP}, v{t3}", [t3], [vVF + mb])
        vv(f"v_add3_u32 v{vVF+mb}, v{vVF+mb}, v{t4}, v{vCM}", [vVF + mb, t4, vCM], [vVF + mb])
        vv(f"v_mul_u32_u24 v{t4}, 172032, v{t1}", [t1], [t4])
        vv(f"v_mul_u32_u24 v{t3}, 384, v{t3}", [t3], [t3])
        vv(f"v_add3_u32 v{vOUT+mb}, v{t4}, v{t3}, v{t2}", [t4, t3, t2], [vOUT + mb])
        if mb == 6:
            vv(f"v_mov_b32 v{t4}, {OOB}", [], [t4])
            vv(f"v_cmp_gt_u32 vcc, 98, v{t0}", [t0], ["vcc"])
            vv(f"v_cndmask_b32 v{vOUT+mb}, v{t4}, v{vOUT+mb}, vcc", [t4, vOUT + mb, "vcc"], [vOUT + mb])
    S(f"s_mul_i32 s{sOB0}, s{sY0}, 224"); S(f"s_add_u32 s{sOB0}, s{sOB0}, s{sX0}"); S(f"s_mul_i32 s{sOB0}, s{sOB0}, 384")
    S(f"s_add_u32 s{sOB1}, s{sOB0}, 86016")
    for ks in range(6):
        a.wait([tWl[ks]])
        for j in range(3):
            for h in range(2):
                if ks < 4: a.ds_read_tr(("a", aWL + (ks * 3 + j) * 4 + 2 * h), vTR, ks * WB + h * 768 + 8 * j)
                else: a.ds_read_tr(("a", aWL + (ks * 3 + j) * 4 + 2 * h), vTRB, (ks - 4) * WB + h * 768 + 8 * j)
    a.wait(lgkm0=True)
    tXg[3] = xrow(3)

    def wsrc(n):
        step, r = divmod(n, 18); dj, ks = divmod(r, 6)
        if step == 0: return sWo, (0 + dj) * MAT + ks * 12288, ""
        if step == 1: return sWo, (6 + dj) * MAT + ks * 12288, ""
        if step == 2: return sWs, (0 + dj) * MAT + ks * 12288, " sc1"
        return sWs, (3 + dj) * MAT + ks * 12288, " sc1"
    tW = {}
    def wdma_main(n):
        sr, off, fl = wsrc(n)
        tW[n] = wdma(sr, off, sSTG, (n % NWB) * WB, fl)
    def wtr_list(n):
        out = []
        for j in range(3):
            for h in range(2):
                def f(j=j, h=h):
                    a.wait([tW[n]])
                    a.ds_read_tr(("a", aWF + (n % 2) * 12 + j * 4 + 2 * h), vTR, (n % NWB) * WB + h * 768 + 8 * j)
                out.append(f)
        return out

    def init_row(r):
        k = (r + 1) // 2
        out = []
        for d in range(6):
            out.append(lambda d=d: vv(f"v_lshlrev_b32 v{mreg(r)+2*d}, 16, v{upreg(k)+d}", [upreg(k) + d], [mreg(r) + 2 * d]))
            out.append(lambda d=d: vv(f"v_and_b32 v{mreg(r)+2*d+1}, 0xffff0000, v{upreg(k)+d}", [upreg(k) + d], [mreg(r) + 2 * d + 1]))
        return out
    def xfrag_reads(r):
        return [lambda ks=ks: a.ds_read_b128(("a", aXF + (r % 2) * 24 + ks * 4), vXF + (r // 8), (r % 8) * RP + ks * 64) for ks in range(6)]
    vtmp = vT + 20
    vset = [0]
    def vwork(t, pos):
        ra, rb, op = {0: (0, 2, "sub"), 3: (1, 3, "sub"), 1: (1, 2, "add"), 2: (2, 1, "sub")}[pos]
        ma, mb_ = mreg(2 * t + ra), mreg(2 * t + rb)
        base = vtmp + (vset[0] % 2) * 14; vset[0] += 1
        out = []
        for d in range(6):
            f0, f1 = base + (d % 2) * 2 + 6, base + (d % 2) * 2 + 7
            out.append(lambda d=d, f0=f0: vv(f"v_{op}_f32 v{f0}, v{ma+2*d}, v{mb_+2*d}", [ma + 2 * d, mb_ + 2 * d], [f0]))
            out.append(lambda d=d, f1=f1: vv(f"v_{op}_f32 v{f1}, v{ma+2*d+1}, v{mb_+2*d+1}", [ma + 2 * d + 1, mb_ + 2 * d + 1], [f1]))
            out.append(lambda d=d, f0=f0, f1=f1: vv(f"v_cvt_pk_bf16_f32 v{base+d}, v{f0}, v{f1}", [f0, f1], [base + d]))
            if pos == 0:
                if d % 2 == 1:
                    out.append(lambda d=d: a.ds_write_b64(vVW, ("v", base + d - 1), t * RP + 8 * (d // 2)))
            else:
                pi_ = {3: 0, 1: 1, 2: 2}[pos]
                out.append(lambda d=d, pi_=pi_: V(f"v_accvgpr_write_b32 a{aVP+(pi_*7+t)*6+d}, v{base+d}", [f"v{base+d}"], [f"a{aVP+(pi_*7+t)*6+d}"]))
        return out
    def producer():
        out = []
        o1, o2 = vT + 40, vT + 44
        x = vT + 0
        for d in range(4):
            for half in range(2):
                def f(d=d, half=half):
                    for di in range(3):
                        if half == 0: vv(f"v_lshlrev_b32 v{x+di}, 16, v{gR+4*di+d}", [gR + 4 * di + d], [x + di])
                        else: vv(f"v_and_b32 v{x+di}, 0xffff0000, v{gR+4*di+d}", [gR + 4 * di + d], [x + di])
                    vv(f"v_add_f32 v{x}, v{x}, v{x+2}", [x, x + 2], [x])
                    vv(f"v_add_f32 v{x+3+half}, v{x}, v{x+1}", [x, x + 1], [x + 3 + half])
                    vv(f"v_mul_f32 v{x+3+half}, 0.5, v{x+3+half}", [x + 3 + half], [x + 3 + half])
                    vv(f"v_sub_f32 v{x+5+half}, v{x}, v{x+1}", [x, x + 1], [x + 5 + half])
                    if half == 1:
                        vv(f"v_cvt_pk_bf16_f32 v{o1+d}, v{x+3}, v{x+4}", [x + 3, x + 4], [o1 + d])
                        vv(f"v_cvt_pk_bf16_f32 v{o2+d}, v{x+5}, v{x+6}", [x + 5, x + 6], [o2 + d])
                out.append(f)
        def st():
            tk.append(a.bstore(4, ("v", o1), vG, sWs, "0", 0, " sc0 sc1"))
            S(f"s_mov_b32 s{sSO}, {3*MAT}", [], [f"s{sSO}"])
            tk.append(a.bstore(4, ("v", o2), vG, sWs, f"s{sSO}", 0, " sc0 sc1"))
        out.append(st)
        return out
    tk = []

    def run(mfmas, fillers):
        n = len(mfmas); k = len(fillers); fi = 0
        for i, m in enumerate(mfmas):
            m()
            upto = (k * (i + 1) + n - 1) // n
            while fi < upto: fillers[fi](); fi += 1
        while fi < k: fillers[fi](); fi += 1

    for f in init_row(0): f()
    a.wait([tXg[0]]); a.barrier()
    for f in xfrag_reads(0): f()
    for r in range(16):
        fill = []
        if r % 4 == 3 and r < 15:
            g = r // 4 + 1
            a.wait([tXg[g]] + (tk if g == 3 else []), lgkm0=True); a.barrier()
            if g == 3:
                vv(f"v_mov_b32 v{t0}, 1", [], [t0])
                a.emit(f"buffer_atomic_add v{t0}, v{vSIG}, s[{sD}:{sD+3}], 0 offen sc1", [f"v{t0}", f"v{vSIG}"], [], "vmem", q="vm")
        if r < 15:
            fill += xfrag_reads(r + 1) + init_row(r + 1)
        if r == 1: fill += producer()
        if r >= 4:
            t = (r - 4) // 2
            fill += (vwork(t, 0) + vwork(t, 3)) if r % 2 == 0 else (vwork(t, 1) + vwork(t, 2))
        if r == 15: fill = wtr_list(0) + fill + vwork(6, 0)
        if r in (8, 9, 10): fill.insert(4, lambda n=r - 8: wdma_main(n))
        mf = [lambda ks=ks, j=j: a.mfma(("v", mreg(r) + 4 * j), ("a", aWL + (ks * 3 + j) * 4), ("a", aXF + (r % 2) * 24 + ks * 4), ("v", mreg(r) + 4 * j))
              for ks in range(6) for j in range(3)]
        run(mf, fill)
    a.wait(lgkm0=True); a.barrier()

    def vfrag_read(n, mb):
        step, r = divmod(n, 18); dj, ks = divmod(r, 6)
        return a.ds_read_b128(("a", aVF + mb * 4), vVF + mb, (step % 2) * VREG + dj * PP + ks * 64)
    for mb in range(7): vfrag_read(0, mb)
    extra = {n: [] for n in range(72)}
    extra[0] += vwork(6, 3); extra[1] += vwork(6, 1); extra[2] += vwork(6, 2)
    for step in range(3):
        wl = []
        for t in range(7):
            for j in range(3):
                wl.append(lambda t=t, j=j, step=step: a.ds_write_b64(vVW + ((step + 1) % 2), ("a", aVP + (step * 7 + t) * 6 + 2 * j), t * RP + 8 * j))
        for i, f in enumerate(wl): extra[step * 18 + 3 + i // 2].append(f)
    fix = {}
    for idx in range(21):
        fix.setdefault(38 + idx // 2, []).append(idx)
    vPOLL = vT + 6
    for n in range(72):
        step, r = divmod(n, 18)
        last = (r == 17)
        if last and n < 71:
            a.wait(lgkm0=True); a.barrier()
        slots = {i: [] for i in range(21)}
        if n + 3 < 72: slots[0].append(lambda n=n: wdma_main(n + 3))
        if n + 1 < 72:
            for i, f in enumerate(wtr_list(n + 1)): slots[4 + 2 * i].append(f)
            for mb in range(7): slots[mb * 3 + 2].append(lambda n=n, mb=mb: vfrag_read(n + 1, mb))
        ex = extra[n]
        for i, f in enumerate(ex): slots[(i * 21) // max(len(ex), 1)].append(f)
        for idx in fix.get(n, []):
            mb, j = divmod(idx, 3)
            sl = (idx + 10) % 21
            for e in range(4):
                ra_, rb_ = accA(mb, j)[1] + e, accB(mb, j)[1] + e
                slots[sl].append(lambda ra_=ra_, rb_=rb_: vv(f"v_fma_f32 v{ra_}, v{rb_}, -0.5, v{ra_}", [ra_, rb_], [ra_]))
        if n == 28:
            def poll0():
                vv(f"v_mov_b32 v{vPOLL+1}, 0", [], [vPOLL + 1])
                a.bload(1, ("v", vPOLL), vPOLL + 1, sD, "0", 0, " sc1")
            slots[6].append(poll0)
        if n == 32:
            def poll1():
                V(f"v_readfirstlane_b32 s{sT2}, v{vPOLL}", [f"v{vPOLL}"], [f"s{sT2}"])
                S(f"s_cmp_ge_u32 s{sT2}, 256", [f"s{sT2}"])
                a.raw("s_cbranch_scc1 Lpoll_ok")
                a.raw(f"s_mov_b32 s{sT3}, 0")
                a.raw("Lpoll:")
                a.raw("s_sleep 8")
                a.raw(f"buffer_load_dword v{vPOLL}, v{vPOLL+1}, s[{sD}:{sD+3}], 0 offen sc1")
                a.raw("s_waitcnt vmcnt(0)")
                a.raw(f"v_readfirstlane_b32 s{sT2}, v{vPOLL}")
                a.raw(f"s_add_u32 s{sT3}, s{sT3}, 1")
                a.raw(f"s_cmp_ge_u32 s{sT3}, 0x40000")
                a.raw("s_cbranch_scc1 Lpoll_ok")
                a.raw(f"s_cmp_lt_u32 s{sT2}, 256")
                a.raw("s_cbranch_scc1 Lpoll")
                a.raw("Lpoll_ok:")
            slots[10].append(poll1)
        for mb in range(7):
            for j in range(3):
                acc = accA(mb, j) if step % 2 == 0 else accB(mb, j)
                if n == 0: c = None
                elif n == 18: c = accA(mb, j)
                else: c = acc
                a.mfma(acc, ("a", aWF + (n % 2) * 12 + j * 4), ("a", aVF + mb * 4), c)
                for f in slots[mb * 3 + j]: f()
    for mb in range(7):
        yb = vT + (mb % 2) * 24
        for row in range(2):
            pk = yb + row * 12
            cst = "0.5" if row == 0 else "-0.5"
            for d in range(6):
                j, e = divmod(2 * d, 4)
                for h in range(2):
                    ra_, rb_ = accA(mb, j)[1] + e + h, accB(mb, j)[1] + e + h
                    vv(f"v_fma_f32 v{pk+6+(d%2)*2+h}, v{rb_}, {cst}, v{ra_}", [ra_, rb_], [pk + 6 + (d % 2) * 2 + h])
                vv(f"v_cvt_pk_bf16_f32 v{pk+d}, v{pk+6+(d%2)*2}, v{pk+7+(d%2)*2}", [pk + 6 + (d % 2) * 2, pk + 7 + (d % 2) * 2], [pk + d])
            a.bstore(4, ("v", pk), vOUT + mb, sO, f"s{sOB0+row}")
            a.bstore(2, ("v", pk + 4), vOUT + mb, sO, f"s{sOB0+row}", 16)
    a.raw("Lend:")
    a.raw("s_endpgm")
    a.raw('.section .rodata,"a"'); a.raw(".p2align 6"); a.raw(f".amdhsa_kernel {NAME}")
    a.raw("  .amdhsa_next_free_vgpr 512"); a.raw("  .amdhsa_next_free_sgpr 80"); a.raw("  .amdhsa_accum_offset 256")
    a.raw("  .amdhsa_group_segment_fixed_size 0"); a.raw("  .amdhsa_kernarg_size 56"); a.raw("  .amdhsa_user_sgpr_count 2")
    a.raw("  .amdhsa_user_sgpr_kernarg_segment_ptr 1"); a.raw("  .amdhsa_system_sgpr_workgroup_id_x 1"); a.raw(".end_amdhsa_kernel")
    return a

if __name__ == "__main__":
    out = sys.argv[1] if len(sys.argv) > 1 else "standalone__detection_seg_fpn_lateral__vision.s"
    a = gen()
    open(out, "w").write(a.text())
    print("lines", len(a.L), "waits", a.nwait, "nops", a.nnop, "est cycles", a.t)
    print({k: v for k, v in sorted(a.count.items(), key=lambda x: -x[1])[:14]})
```

```python
import sys
from asmlib import *

NAME = "standalone__detection_seg_fpn_lateral__vision_kernel"
RP = 6624
PP = 400
XREG = 16 * RP
VREG = 7 * RP
WB = 3072
NWB = 4
LDS = XREG + 4 * NWB * WB
XB = 14 * RP
OOB = 0x40000000
MAT = 73728

HEADER = """; Kernarg layout for this problem (56 bytes, ptrs only, base s[0:1]):
;   offset   0: d_in[0] c_fine  shape=(1, 224, 224, 192) dtype=bfloat16
;   offset   8: d_in[1] p_coarse  shape=(1, 112, 112, 192) dtype=bfloat16
;   offset  16: d_in[2] w_lat  shape=(192, 192) dtype=bfloat16
;   offset  24: d_in[3] w_out  shape=(3, 3, 192, 192) dtype=bfloat16
;   offset  32: d_out     shape=(1, 224, 224, 192) dtype=bfloat16 (2 bytes/elem)
;   offset  40: d_debug   256 bytes
;   offset  48: d_ws      workspace
; @launch grid=(256,1,1) block=(256,1,1) lds=%d
""" % LDS

sX, sP, sWl, sWo, sO, sD, sWs = 20, 24, 28, 32, 36, 40, 44
sW, sY0, sX0, sSTG, sT0, sT1, sT2, sT3, sOB0, sOB1, sSO, sXB = 48, 49, 50, 51, 52, 53, 54, 55, 56, 57, 58, 59
sROW = 60
sUP = 64
sT4 = 73
sWOFF = 19
vL, vI, vKG, vPI, vCM = 1, 2, 3, 4, 5
vXD = 6
vWD = 13
vTR = 16
vXF = 17
vVF = 19
vVW = 26
vUP = 28
vG = 29
vTRX = 30
vSIG = 31
vACC = 32
vOUT = 200
vT = 208
gR = 86
aVP = 0
aWL = 128
aXF = 200
aVF = 128
aWF = 200

def accA(mb, j): return ("v", vACC + (mb * 3 + j) * 4)
def accB(mb, j): return ("v", vACC + 84 + (mb * 3 + j) * 4)
def mreg(r): return vACC + (6 + (r % 8)) * 12
def upreg(k): return vACC + k * 6
def ufreg(k): return vT + 6 + (k % 2) * 12
def wfin(f): return 4 * f if f < 31 else 156 + 4 * (f - 31)
def vring(i): i %= 12; return 176 + 4 * i if i < 6 else 224 + 4 * (i - 6)

def gen(opt=None):
    opt = opt or {}
    a = Asm()
    a.raw(HEADER.rstrip())
    a.raw('.amdgcn_target "amdgcn-amd-amdhsa--gfx950"')
    a.raw(".text"); a.raw(f".globl {NAME}"); a.raw(".p2align 8"); a.raw(f".type {NAME},@function"); a.raw(f"{NAME}:")
    S, V = a.salu, a.valu
    nst = [0]
    def stamp(name=""):
        if not opt.get("stamp"): return
        a.wait(lgkm0=True)
        k = nst[0]; nst[0] += 1
        assert k < 12
        a.raw(f"s_memrealtime s[74:75]")
        a.raw(f"s_memtime s[100:101]")
        a.raw("s_waitcnt lgkmcnt(0)")
        a.raw(f"s_mov_b32 s{76+k}, s74")
        a.raw(f"s_mov_b32 s{88+k}, s100")
    S("s_cmp_ge_u32 s2, 256")
    a.raw("s_cbranch_scc1 Lend")
    stamp("start")
    a.raw("s_load_dwordx8 s[4:11], s[0:1], 0")
    a.raw("s_load_dwordx4 s[12:15], s[0:1], 32")
    a.raw("s_load_dwordx2 s[16:17], s[0:1], 48")
    S(f"s_and_b32 s{sT0}, s2, 7"); S(f"s_lshr_b32 s{sT1}, s2, 3")
    S(f"s_lshr_b32 s{sT2}, s{sT0}, 1"); S(f"s_lshl_b32 s{sT2}, s{sT2}, 2"); S(f"s_lshr_b32 s{sT3}, s{sT1}, 3")
    S(f"s_add_u32 s{sT2}, s{sT2}, s{sT3}"); S(f"s_mul_i32 s{sY0}, s{sT2}, 14")
    S(f"s_and_b32 s{sT2}, s{sT0}, 1"); S(f"s_lshl_b32 s{sT2}, s{sT2}, 3"); S(f"s_and_b32 s{sT3}, s{sT1}, 7")
    S(f"s_add_u32 s{sT2}, s{sT2}, s{sT3}"); S(f"s_mul_i32 s{sX0}, s{sT2}, 14")
    t0, t1, t2, t3, t4 = vT, vT + 1, vT + 2, vT + 3, vT + 4
    vTRB = vT + 5
    vPOLL = vT + 6
    def vv(text, rd, wr): V(text, [f"v{x}" if isinstance(x, int) else x for x in rd], [f"v{x}" if isinstance(x, int) else x for x in wr])
    vv(f"v_lshrrev_b32 v{t0}, 6, v0", ["v0"], [t0])
    vv(f"v_and_b32 v{vL}, 63, v0", ["v0"], [vL])
    V(f"v_readfirstlane_b32 s{sW}, v{t0}", [f"v{t0}"], [f"s{sW}"])
    S(f"s_mul_i32 s{sSTG}, s{sW}, {NWB*WB}", [f"s{sW}"]); S(f"s_add_u32 s{sSTG}, s{sSTG}, {XREG}")
    S(f"s_mul_i32 s{sT0}, s{sW}, 96")
    S(f"s_add_u32 s{sT1}, s{sW}, 12"); S(f"s_mul_i32 s{sT1}, s{sT1}, {RP}")
    S(f"s_mul_i32 s{sXB}, s{sW}, 3312"); S(f"s_add_u32 s{sXB}, s{sXB}, {XB}")
    S(f"s_mul_i32 s{sT3}, s{sW}, {RP}")
    for i in range(3):
        vv(f"v_add_u32 v{t0}, {64*i}, v{vL}", [vL], [t0])
        vv(f"v_mul_u32_u24 v{t1}, 10923, v{t0}", [t0], [t1]); vv(f"v_lshrrev_b32 v{t1}, 16, v{t1}", [t1], [t1])
        vv(f"v_mul_u32_u24 v{t2}, 6, v{t1}", [t1], [t2]); vv(f"v_sub_u32 v{t2}, v{t0}, v{t2}", [t0, t2], [t2])
        vv(f"v_and_b32 v{t3}, 3, v{t1}", [t1], [t3])
        vv(f"v_bfe_u32 v{t4}, v{t1}, 2, 1", [t1], [t4]); vv(f"v_lshl_add_u32 v{t3}, v{t4}, 4, v{t3}", [t4, t3], [t3])
        vv(f"v_lshrrev_b32 v{t4}, 3, v{t1}", [t1], [t4]); vv(f"v_lshl_add_u32 v{t3}, v{t4}, 2, v{t3}", [t4, t3], [t3])
        vv(f"v_mul_u32_u24 v{t3}, 384, v{t3}", [t3], [t3])
        vv(f"v_lshl_add_u32 v{t3}, v{t2}, 4, v{t3}", [t2, t3], [t3])
        vv(f"v_add_u32 v{t3}, s{sT0}, v{t3}", [t3, f"s{sT0}"], [t3])
        vv(f"v_subrev_u32 v{vWD+i}, {1024*i}, v{t3}", [t3], [vWD + i])
    S(f"s_sub_u32 s{sT2}, s{sX0}, 1")
    vv(f"v_mov_b32 v{t4}, {OOB}", [], [t4])
    for j in range(7):
        vv(f"v_add_u32 v{t0}, {64*j}, v{vL}", [vL], [t0])
        vv(f"v_mul_u32_u24 v{t1}, 2622, v{t0}", [t0], [t1]); vv(f"v_lshrrev_b32 v{t1}, 16, v{t1}", [t1], [t1])
        vv(f"v_mul_u32_u24 v{t2}, 25, v{t1}", [t1], [t2]); vv(f"v_sub_u32 v{t2}, v{t0}, v{t2}", [t0, t2], [t2])
        vv(f"v_add_u32 v{t1}, s{sT2}, v{t1}", [t1, f"s{sT2}"], [t1])
        vv(f"v_cmp_gt_u32 vcc, 224, v{t1}", [t1], ["vcc"])
        vv(f"v_cmp_gt_u32 s[18:19], 24, v{t2}", [t2], ["s18", "s19"])
        vv(f"v_mul_u32_u24 v{t3}, 384, v{t1}", [t1], [t3])
        vv(f"v_lshl_add_u32 v{t3}, v{t2}, 4, v{t3}", [t2, t3], [t3])
        vv(f"v_cndmask_b32 v{t3}, v{t4}, v{t3}, vcc", [t4, t3, "vcc"], [t3])
        vv(f"v_cndmask_b32 v{vXD+j}, v{t4}, v{t3}, s[18:19]", [t4, t3, "s18", "s19"], [vXD + j])
    for g in range(4):
        S(f"s_add_u32 s{sT2}, s{sY0}, s{sW}"); S(f"s_add_u32 s{sT2}, s{sT2}, {4*g-1}")
        S(f"s_mul_i32 s{sROW+g}, s{sT2}, 86016")
        S(f"s_cmp_lt_u32 s{sT2}, 224"); S(f"s_cselect_b32 s{sROW+g}, s{sROW+g}, {OOB}")
    a.raw("s_waitcnt lgkmcnt(0)")
    def srd(d, p, n):
        S(f"s_mov_b32 s{d}, s{p}"); S(f"s_mov_b32 s{d+1}, s{p+1}"); S(f"s_mov_b32 s{d+2}, {n}"); S(f"s_mov_b32 s{d+3}, 0x00020000")
    srd(sWl, 8, MAT); srd(sX, 4, 19267584)

    def wdma_parts(srd_, soff_val, ldsbase_sreg, ldsoff, flags, setter):
        def setup():
            S(f"s_add_u32 m0, s{ldsbase_sreg}, {ldsoff}", [f"s{ldsbase_sreg}"], ["m0"])
            if srd_ == sWs: S(f"s_add_u32 s{sSO}, s{sWOFF}, {soff_val}", [], [f"s{sSO}"])
            else: S(f"s_mov_b32 s{sSO}, {soff_val}", [], [f"s{sSO}"])
        out = [setup]
        for i in range(3):
            def f(i=i):
                tk = a.dma(vI if srd_ == sWs else vWD + i, srd_, f"s{sSO}", 1024 * i, flags)
                if i == 2: setter(tk)
            out.append(f)
        return out
    def wdma(srd_, soff_val, ldsbase_sreg, ldsoff, flags=""):
        S(f"s_add_u32 m0, s{ldsbase_sreg}, {ldsoff}", [f"s{ldsbase_sreg}"], ["m0"])
        S(f"s_mov_b32 s{sSO}, {soff_val}", [], [f"s{sSO}"])
        tk = None
        for i in range(3): tk = a.dma(vWD + i, srd_, f"s{sSO}", 1024 * i, flags)
        return tk
    tXg = [None] * 4
    def xrow_parts(g):
        out = []
        for j in range(7):
            def f(j=j):
                S(f"s_add_u32 m0, s{sT3}, {4*g*RP + 1024*j}", [], ["m0"])
                if j == 6: S("s_mov_b64 exec, 0xffff")
                tk = a.dma(vXD + j, sX, f"s{sROW+g}")
                if j == 6:
                    S("s_mov_b64 exec, -1"); tXg[g] = tk
            out.append(f)
        return out
    def up_parts(k):
        return [lambda: a.bload(4, ("v", upreg(k)), vUP, sP, f"s{sUP+k}"),
                lambda: a.bload(2, ("v", upreg(k) + 4), vUP, sP, f"s{sUP+k}", 16)]
    tWl = []
    if opt.get("early"): stamp("pre-dma")
    for f in xrow_parts(0): f()
    if opt.get("x1first"):
        for f in xrow_parts(1): f()
    if opt.get("early"): stamp("x0 issued")
    for ks in range(6):
        if ks < 4: tWl.append(wdma(sWl, ks * 12288, sSTG, ks * WB))
        else: tWl.append(wdma(sWl, ks * 12288, sT1, (ks - 4) * WB))
    if opt.get("early"): stamp("wl issued")
    vv(f"v_and_b32 v{vI}, 15, v{vL}", [vL], [vI])
    vv(f"v_lshrrev_b32 v{vKG}, 4, v{vL}", [vL], [vKG])
    vv(f"v_lshlrev_b32 v{t0}, 1, v{vI}", [vI], [t0])
    vv(f"v_subrev_u32 v{vPI}, 7, v{t0}", [t0], [vPI])
    vv(f"v_subrev_u32 v{t1}, 16, v{t0}", [t0], [t1])
    vv(f"v_cmp_gt_u32 vcc, 4, v{vI}", [vI], ["vcc"])
    vv(f"v_cndmask_b32 v{vPI}, v{vPI}, v{t0}, vcc", [vPI, t0, "vcc"], [vPI])
    vv(f"v_cmp_lt_u32 vcc, 11, v{vI}", [vI], ["vcc"])
    vv(f"v_cndmask_b32 v{vPI}, v{vPI}, v{t1}, vcc", [vPI, t1, "vcc"], [vPI])
    srd(sP, 6, 4816896)
    S(f"s_lshr_b32 s{sT4}, s{sY0}, 1")
    for k in range(9):
        S(f"s_add_u32 s{sT2}, s{sT4}, {k-1}")
        S(f"s_mul_i32 s{sUP+k}, s{sT2}, 43008")
        S(f"s_cmp_lt_u32 s{sT2}, 112"); S(f"s_cselect_b32 s{sUP+k}, s{sUP+k}, {OOB}")
    S(f"s_sub_u32 s{sT2}, s{sX0}, 1")
    vv(f"v_add_u32 v{t0}, s{sT2}, v{vPI}", [vPI, f"s{sT2}"], [t0])
    vv(f"v_ashrrev_i32 v{t0}, 1, v{t0}", [t0], [t0])
    vv(f"v_mul_u32_u24 v{t1}, 384, v{t0}", [t0], [t1])
    vv(f"v_mul_u32_u24 v{t2}, 24, v{vKG}", [vKG], [t2])
    vv(f"v_add3_u32 v{t1}, v{t1}, v{t2}, s{sT0}", [t1, t2, f"s{sT0}"], [t1])
    vv(f"v_cmp_gt_u32 vcc, 112, v{t0}", [t0], ["vcc"])
    vv(f"v_cndmask_b32 v{vUP}, v{t4}, v{t1}, vcc", [t4, t1, "vcc"], [vUP])
    for k in range(3):
        for f in up_parts(k): f()
    if not opt.get("x1first"):
        for f in xrow_parts(1): f()
    srd(sWo, 10, 9 * MAT); srd(sO, 12, 19267584); srd(sD, 14, 256); srd(sWs, 16, 6 * MAT)
    vv(f"v_and_b32 v{t0}, 1, v{vKG}", [vKG], [t0]); vv(f"v_lshlrev_b32 v{t0}, 5, v{t0}", [t0], [t0])
    vv(f"v_lshrrev_b32 v{t1}, 1, v{vKG}", [vKG], [t1]); vv(f"v_lshl_add_u32 v{vCM}, v{t1}, 4, v{t0}", [t1, t0], [vCM])
    vv(f"v_lshrrev_b32 v{t0}, 2, v{vI}", [vI], [t0])
    vv(f"v_and_b32 v{t1}, 1, v{vKG}", [vKG], [t1]); vv(f"v_lshl_add_u32 v{t0}, v{t1}, 2, v{t0}", [t1, t0], [t0])
    vv(f"v_lshrrev_b32 v{t1}, 1, v{vKG}", [vKG], [t1]); vv(f"v_lshl_add_u32 v{t0}, v{t1}, 4, v{t0}", [t1, t0], [t0])
    vv(f"v_mul_u32_u24 v{t0}, 96, v{t0}", [t0], [t0])
    vv(f"v_and_b32 v{t1}, 3, v{vL}", [vL], [t1]); vv(f"v_mul_u32_u24 v{t1}, 24, v{t1}", [t1], [t1])
    vv(f"v_add3_u32 v{vTR}, v{t0}, v{t1}, s{sSTG}", [t0, t1, f"s{sSTG}"], [vTR])
    vv(f"v_add3_u32 v{vTRB}, v{t0}, v{t1}, s{sT1}", [t0, t1, f"s{sT1}"], [vTRB])
    vv(f"v_add3_u32 v{vTRX}, v{t0}, v{t1}, s{sXB}", [t0, t1, f"s{sXB}"], [vTRX])
    S(f"s_lshl_b32 s{sT2}, s2, 2"); S(f"s_add_u32 s{sT2}, s{sT2}, s{sW}"); S(f"s_mul_i32 s{sT2}, s{sT2}, 14")
    vv(f"v_add_u32 v{t0}, s{sT2}, v{vL}", [vL, f"s{sT2}"], [t0])
    vv(f"v_lshlrev_b32 v{t1}, 4, v{t0}", [t0], [t1])
    vv(f"v_cmp_gt_u32 vcc, 14, v{vL}", [vL], ["vcc"])
    vv(f"v_cndmask_b32 v{t1}, v{t4}, v{t1}, vcc", [t4, t1, "vcc"], [t1])
    vv(f"v_cmp_gt_u32 vcc, 13824, v{t0}", [t0], ["vcc"])
    vv(f"v_cndmask_b32 v{vG}, v{t4}, v{t1}, vcc", [t4, t1, "vcc"], [vG])
    vGD = 100
    vv(f"v_mul_u32_u24 v{t1}, 43691, v{t0}", [t0], [t1]); vv(f"v_lshrrev_b32 v{t1}, 20, v{t1}", [t1], [t1])
    vv(f"v_mul_u32_u24 v{t2}, 24, v{t1}", [t1], [t2]); vv(f"v_sub_u32 v{t2}, v{t0}, v{t2}", [t0, t2], [t2])
    vv(f"v_mul_u32_u24 v{t3}, 43, v{t2}", [t2], [t3]); vv(f"v_lshrrev_b32 v{t3}, 8, v{t3}", [t3], [t3])
    vv(f"v_lshrrev_b32 v{vGD}, 5, v{t1}", [t1], [vGD]); vv(f"v_lshl_add_u32 v{vGD}, v{vGD}, 2, v{t3}", [vGD, t3], [vGD])
    vv(f"v_mul_u32_u24 v{vGD}, 192, v{vGD}", [vGD], [vGD])
    vv(f"v_mul_u32_u24 v{t3}, 6, v{t3}", [t3], [t3]); vv(f"v_sub_u32 v{t2}, v{t2}, v{t3}", [t2, t3], [t2])
    vv(f"v_add_u32 v{vGD}, v{vGD}, v{t2}", [vGD, t2], [vGD])
    vv(f"v_and_b32 v{t2}, 3, v{t1}", [t1], [t2])
    vv(f"v_bfe_u32 v{t3}, v{t1}, 4, 1", [t1], [t3]); vv(f"v_lshl_add_u32 v{t2}, v{t3}, 2, v{t2}", [t3, t2], [t2])
    vv(f"v_bfe_u32 v{t3}, v{t1}, 2, 2", [t1], [t3]); vv(f"v_lshl_add_u32 v{t2}, v{t3}, 3, v{t2}", [t3, t2], [t2])
    vv(f"v_mul_u32_u24 v{t2}, 6, v{t2}", [t2], [t2])
    vv(f"v_add_lshl_u32 v{vGD}, v{vGD}, v{t2}, 4", [vGD, t2], [vGD])
    vv(f"v_cmp_gt_u32 vcc, {OOB}, v{vG}", [vG], ["vcc"])
    vv(f"v_cndmask_b32 v{vGD}, v{t4}, v{vGD}, vcc", [t4, vGD, "vcc"], [vGD])
    vLIN = vI
    vv(f"v_lshlrev_b32 v{vLIN}, 4, v{vL}", [vL], [vLIN])
    S(f"s_mul_i32 s{sWOFF}, s{sW}, {WB}")
    vv(f"v_cmp_eq_u32 vcc, 0, v0", ["v0"], ["vcc"])
    vv(f"v_cndmask_b32 v{vSIG}, v{t4}, v0, vcc", [t4, "v0", "vcc"], [vSIG])
    def g_parts():
        out = []
        for di in range(3):
            def f(di=di):
                S(f"s_mov_b32 s{sSO}, {di*3*MAT}", [], [f"s{sSO}"])
                a.bload(4, ("v", gR + 4 * di), vG, sWo, f"s{sSO}")
            out.append(f)
        return out
    for f in g_parts(): f()
    vv(f"v_mul_u32_u24 v{t0}, {PP}, v{vPI}", [vPI], [t0])
    vv(f"v_add_u32 v{vXF}, v{t0}, v{vCM}", [t0, vCM], [vXF])
    vv(f"v_add_u32 v{vXF+1}, {8*RP}, v{vXF}", [vXF], [vXF + 1])
    vv(f"v_mul_u32_u24 v{t2}, 24, v{vKG}", [vKG], [t2])
    vv(f"v_add3_u32 v{vVW}, v{t0}, v{t2}, s{sT0}", [t0, t2, f"s{sT0}"], [vVW])
    vv(f"v_add_u32 v{vVW+1}, {VREG}, v{vVW}", [vVW], [vVW + 1])
    vv(f"v_add_u32 v{t2}, s{sT0}, v{t2}", [t2, f"s{sT0}"], [t2])
    for mb in range(7):
        vv(f"v_add_u32 v{t0}, {16*mb}, v{vPI}", [vPI], [t0])
        vv(f"v_mul_u32_u24 v{t1}, 4682, v{t0}", [t0], [t1]); vv(f"v_lshrrev_b32 v{t1}, 16, v{t1}", [t1], [t1])
        vv(f"v_mul_u32_u24 v{t3}, 14, v{t1}", [t1], [t3]); vv(f"v_sub_u32 v{t3}, v{t0}, v{t3}", [t0, t3], [t3])
        vv(f"v_mul_u32_u24 v{vOUT+mb}, {RP}, v{t1}", [t1], [vOUT + mb])
        vv(f"v_mul_u32_u24 v{vVF+mb}, {PP}, v{t3}", [t3], [vVF + mb])
        vv(f"v_add3_u32 v{vVF+mb}, v{vVF+mb}, v{vOUT+mb}, v{vCM}", [vVF + mb, vOUT + mb, vCM], [vVF + mb])
        vv(f"v_mul_u32_u24 v{t1}, 172032, v{t1}", [t1], [t1])
        vv(f"v_mul_u32_u24 v{t3}, 384, v{t3}", [t3], [t3])
        vv(f"v_add3_u32 v{vOUT+mb}, v{t1}, v{t3}, v{t2}", [t1, t3, t2], [vOUT + mb])
        if mb == 6:
            vv(f"v_cmp_gt_u32 vcc, 98, v{t0}", [t0], ["vcc"])
            vv(f"v_cndmask_b32 v{vOUT+mb}, v{t4}, v{vOUT+mb}, vcc", [t4, vOUT + mb, "vcc"], [vOUT + mb])
    S(f"s_mul_i32 s{sOB0}, s{sY0}, 224"); S(f"s_add_u32 s{sOB0}, s{sOB0}, s{sX0}"); S(f"s_mul_i32 s{sOB0}, s{sOB0}, 384")
    S(f"s_add_u32 s{sOB1}, s{sOB0}, 86016")
    stamp("issued")
    for ks in range(6):
        a.wait([tWl[ks]])
        for j in range(3):
            for h in range(2):
                if ks < 4: a.ds_read_tr(("a", aWL + (ks * 3 + j) * 4 + 2 * h), vTR, ks * WB + h * 768 + 8 * j)
                else: a.ds_read_tr(("a", aWL + (ks * 3 + j) * 4 + 2 * h), vTRB, (ks - 4) * WB + h * 768 + 8 * j)
    stamp("wl")
    later = {}
    def at(r, parts): later.setdefault(r, []).extend(parts)
    seq = xrow_parts(2) + up_parts(3) + up_parts(4) + xrow_parts(3) + up_parts(5) + up_parts(6) + up_parts(7) + up_parts(8)
    per = opt.get("per", 3); pre = opt.get("pre", 0)
    at(-1, seq[:pre]); seq = seq[pre:]
    r_ = 0
    while seq:
        at(r_, seq[:per]); seq = seq[per:]; r_ += 1

    def wsrc(n):
        step, r = divmod(n, 18); dj, ks = divmod(r, 6)
        if step == 0: return sWo, (0 + dj) * MAT + ks * 12288, ""
        if step == 1: return sWo, (6 + dj) * MAT + ks * 12288, ""
        fl = "" if opt.get("nosc1") else " sc1"
        if step == 2: return sWs, (0 + dj) * MAT + ks * 12288, fl
        return sWs, (3 + dj) * MAT + ks * 12288, fl
    tW = {}; tTR = {}
    NF = 60
    def wdma_main(n):
        sr, off, fl = wsrc(n)
        if n >= NF: return wdma_parts(sr, off, sXB, 0, fl, lambda tk: tW.__setitem__(n, tk))
        return wdma_parts(sr, off, sSTG, (n % NWB) * WB, fl, lambda tk: tW.__setitem__(n, tk))
    def wtr_list(n):
        out = []
        for j in range(3):
            for h in range(2):
                def f(j=j, h=h):
                    a.wait([tW[n]])
                    if n >= NF: tTR[n] = a.ds_read_tr(("a", wfin((n - NF) * 3 + j) + 2 * h), vTRX, h * 768 + 8 * j)
                    else: a.ds_read_tr(("a", aWF + (n % 2) * 12 + j * 4 + 2 * h), vTR, (n % NWB) * WB + h * 768 + 8 * j)
                out.append(f)
        return out

    def unpack_up(k):
        out = []
        for d in range(6):
            out.append(lambda d=d: vv(f"v_lshlrev_b32 v{ufreg(k)+2*d}, 16, v{upreg(k)+d}", [upreg(k) + d], [ufreg(k) + 2 * d]))
            out.append(lambda d=d: vv(f"v_and_b32 v{ufreg(k)+2*d+1}, 0xffff0000, v{upreg(k)+d}", [upreg(k) + d], [ufreg(k) + 2 * d + 1]))
        return out
    def xfrag_reads(r):
        return [lambda ks=ks: a.ds_read_b128(("a", aXF + (r % 2) * 24 + ks * 4), vXF + (r // 8), (r % 8) * RP + ks * 64) for ks in range(6)]
    vsets = [vT + 30, 86]
    vset = [0]
    def vwork(t, pos, late=False):
        ra, rb, op = {0: (0, 2, "sub"), 3: (1, 3, "sub"), 1: (1, 2, "add"), 2: (2, 1, "sub")}[pos]
        ma, mb_ = mreg(2 * t + ra), mreg(2 * t + rb)
        base = vsets[0] if late else vsets[vset[0] % 2]; vset[0] += 1
        fb = base + 6
        out = []
        for e in range(12):
            out.append(lambda e=e: vv(f"v_{op}_f32 v{fb+e}, v{ma+e}, v{mb_+e}", [ma + e, mb_ + e], [fb + e]))
        for d in range(6):
            out.append(lambda d=d: vv(f"v_cvt_pk_bf16_f32 v{base+d}, v{fb+2*d}, v{fb+2*d+1}", [fb + 2 * d, fb + 2 * d + 1], [base + d]))
        for d in range(6):
            if pos == 0:
                if d % 2 == 1:
                    out.append(lambda d=d: a.ds_write_b64(vVW, ("v", base + d - 1), t * RP + 8 * (d // 2)))
            else:
                pi_ = {3: 0, 1: 1, 2: 2}[pos]
                out.append(lambda d=d, pi_=pi_: V(f"v_accvgpr_write_b32 a{aVP+(pi_*7+t)*6+d}, v{base+d}", [f"v{base+d}"], [f"a{aVP+(pi_*7+t)*6+d}"]))
        return out
    tk = []
    def producer():
        out = []
        o1, o2 = vT + 40, vT + 44
        x = vT + 32
        for d in range(4):
            for half in range(2):
                def f(d=d, half=half):
                    for di in range(3):
                        if half == 0: vv(f"v_lshlrev_b32 v{x+di}, 16, v{gR+4*di+d}", [gR + 4 * di + d], [x + di])
                        else: vv(f"v_and_b32 v{x+di}, 0xffff0000, v{gR+4*di+d}", [gR + 4 * di + d], [x + di])
                    vv(f"v_add_f32 v{x}, v{x}, v{x+2}", [x, x + 2], [x])
                    vv(f"v_add_f32 v{x+3+half}, v{x}, v{x+1}", [x, x + 1], [x + 3 + half])
                    vv(f"v_mul_f32 v{x+3+half}, 0.5, v{x+3+half}", [x + 3 + half], [x + 3 + half])
                    vv(f"v_sub_f32 v{x+5+half}, v{x}, v{x+1}", [x, x + 1], [x + 5 + half])
                    if half == 1:
                        vv(f"v_cvt_pk_bf16_f32 v{o1+d}, v{x+3}, v{x+4}", [x + 3, x + 4], [o1 + d])
                        vv(f"v_cvt_pk_bf16_f32 v{o2+d}, v{x+5}, v{x+6}", [x + 5, x + 6], [o2 + d])
                out.append(f)
        def st():
            tk.append(a.bstore(4, ("v", o1), vGD, sWs, "0", 0, " sc0 sc1"))
            S(f"s_mov_b32 s{sSO}, {3*MAT}", [], [f"s{sSO}"])
            tk.append(a.bstore(4, ("v", o2), vGD, sWs, f"s{sSO}", 0, " sc0 sc1"))
        out.append(st)
        return out

    def run(mfmas, fillers):
        n = len(mfmas); k = len(fillers); fi = 0
        for i, m in enumerate(mfmas):
            m()
            upto = (k * (i + 1) + n - 1) // n
            while fi < upto: fillers[fi](); fi += 1
        while fi < k: fillers[fi](); fi += 1

    a.wait(lgkm0=True)
    for f in later.get(-1, []): f()
    for f in unpack_up(0): f()
    a.wait([tXg[0]]); a.barrier()
    stamp("g0")
    for f in xfrag_reads(0): f()
    rprod = opt.get("r_prod", 3)
    assert rprod <= 3
    for r in range(16):
        fill = []
        if r % 4 == 3 and r < 15:
            g = r // 4 + 1
            a.wait([tXg[g]] + (tk if g == 3 else []), lgkm0=True); a.barrier()
            if g == 3:
                vv(f"v_mov_b32 v{t0}, 1", [], [t0])
                a.emit(f"buffer_atomic_add v{t0}, v{vSIG}, s[{sD}:{sD+3}], 0 offen sc1", [f"v{t0}", f"v{vSIG}"], [], "vmem", q="vm")
            if g in (1, 2): stamp(f"g{g}")
        if r < 15: fill += xfrag_reads(r + 1)
        fill += later.get(r, [])
        if r < 15 and r % 2 == 0: fill += unpack_up(r // 2 + 1)
        if r == rprod: fill += producer()
        if r >= 4:
            t = (r - 4) // 2
            fill += (vwork(t, 0) + vwork(t, 3)) if r % 2 == 0 else (vwork(t, 1) + vwork(t, 2))
        if r == 15: fill = wtr_list(0) + fill + vwork(6, 0)
        if r in (8, 9, 10): fill = fill[:4] + wdma_main(r - 8) + fill[4:]
        k = (r + 1) // 2
        mf = [lambda ks=ks, j=j: a.mfma(("v", mreg(r) + 4 * j), ("a", aWL + (ks * 3 + j) * 4), ("a", aXF + (r % 2) * 24 + ks * 4),
                                        ("v", (ufreg(k) if ks == 0 else mreg(r)) + 4 * j))
              for ks in range(6) for j in range(3)]
        run(mf, fill)
    a.wait(lgkm0=True); a.barrier()
    stamp("lat end")

    def vfrag_off(n):
        step, r = divmod(n, 18); dj, ks = divmod(r, 6)
        return (step % 2) * VREG + dj * PP + ks * 64
    def vfrag_read(n, mb):
        return a.ds_read_b128(("a", aVF + mb * 4), vVF + mb, vfrag_off(n))
    for mb in range(7): vfrag_read(0, mb)
    extra = {n: [] for n in range(72)}
    extra[0] += vwork(6, 3, True); extra[1] += vwork(6, 1, True); extra[2] += vwork(6, 2, True)
    for step in range(3):
        wl = []
        for t in range(7):
            for j in range(3):
                wl.append(lambda t=t, j=j, step=step: a.ds_write_b64(vVW + ((step + 1) % 2), ("a", aVP + (step * 7 + t) * 6 + 2 * j), t * RP + 8 * j))
        for i, f in enumerate(wl): extra[step * 18 + 3 + i // 2].append(f)
    fix = {}
    for idx in range(21): fix.setdefault(38 + idx // 2, []).append(idx)
    fin_dma = {21 + 3 * e: NF + e for e in range(12)}
    fin_tr = {24 + 3 * e: NF + e for e in range(12)}
    if opt.get("nofin"): fin_dma = {}; fin_tr = {}
    if opt.get("nofintr"): fin_tr = {}
    if opt.get("nofindma"):
        fin_dma = {}
        for e in range(12): tW[NF + e] = None
    NFV = 12
    def fin_vread(i):
        mb, kk = divmod(i, NFV)
        return a.ds_read_b128(("a", vring(i)), vVF + mb, vfrag_off(NF + kk))
    for n in range(NF):
        step, r = divmod(n, 18)
        last = (r == 17)
        if last:
            a.wait(lgkm0=True); a.barrier()
            if not opt.get("early"): stamp("step")
        slots = {i: [] for i in range(21)}
        load = [0] * 21
        for mb in range(1, 8): load[3 * mb - 1] += opt.get("wres", 2)
        def put(f, g, c=4): slots[g].append(f); load[g] += c
        def seqput(fs, lo, hi, c=4):
            g = lo
            for k, f in enumerate(fs):
                rem = len(fs) - k - 1
                cand = [x for x in range(g, hi + 1)]
                best = min(cand, key=lambda x: (max(load[x] + c - 8, 0) + (1000 if (hi - x) * 2 < rem else 0), x))
                put(f, best, c); g = best
        if n + 3 < NF:
            for f, g in zip(wdma_main(n + 3), (0, 1, 4, 7)): put(f, g, 8)
        if n + 1 < NF:
            for mb in range(7): put(lambda n=n, mb=mb: vfrag_read(n + 1, mb), mb * 3 + 2)
            for f, g in zip(wtr_list(n + 1), (3, 6, 9, 10, 12, 13)): put(f, g)
        else:
            for i in range(8): put(lambda i=i: fin_vread(i), 2 + 2 * i)
        if n in fin_tr:
            seqput(wtr_list(fin_tr[n]), 0, 10)
            put(lambda n=n: a.wait([tTR[fin_tr[n]]]), 15)
        if n in fin_dma:
            for f, g in zip(wdma_main(fin_dma[n]), (15, 16, 18, 19)): put(f, g, 8)
        for idx in fix.get(n, []):
            mb, j = divmod(idx, 3)
            fs = []
            for e in range(4):
                ra_, rb_ = accA(mb, j)[1] + e, accB(mb, j)[1] + e
                fs.append(lambda ra_=ra_, rb_=rb_: vv(f"v_fma_f32 v{ra_}, v{rb_}, -0.5, v{ra_}", [ra_, rb_], [ra_]))
            if idx <= 8: seqput(fs, idx + 6, 20)
            else: seqput(fs, 0, idx - 3)
        seqput(extra[n], 0, 20)
        if n == 14:
            def poll0():
                vv(f"v_mov_b32 v{vPOLL+1}, 0", [], [vPOLL + 1])
                a.bload(1, ("v", vPOLL), vPOLL + 1, sD, "0", 0, " sc1")
            slots[6].append(poll0)
        if n == 19:
            def poll1():
                V(f"v_readfirstlane_b32 s{sT2}, v{vPOLL}", [f"v{vPOLL}"], [f"s{sT2}"])
                S(f"s_cmp_ge_u32 s{sT2}, 256", [f"s{sT2}"])
                a.raw("s_cbranch_scc1 Lpoll_ok")
                a.raw(f"s_mov_b32 s{sT4}, 0")
                a.raw("Lpoll:")
                a.raw("s_sleep 8")
                a.raw(f"buffer_load_dword v{vPOLL}, v{vPOLL+1}, s[{sD}:{sD+3}], 0 offen sc1")
                a.raw("s_waitcnt vmcnt(0)")
                a.raw(f"v_readfirstlane_b32 s{sT2}, v{vPOLL}")
                a.raw(f"s_add_u32 s{sT4}, s{sT4}, 1")
                a.raw(f"s_cmp_ge_u32 s{sT4}, 0x40000")
                a.raw("s_cbranch_scc1 Lpoll_ok")
                a.raw(f"s_cmp_lt_u32 s{sT2}, 256")
                a.raw("s_cbranch_scc1 Lpoll")
                a.raw("Lpoll_ok:")
            slots[10].append(poll1)
        for mb in range(7):
            for j in range(3):
                acc = accA(mb, j) if step % 2 == 0 else accB(mb, j)
                if n == 0: c = None
                elif n == 18: c = accA(mb, j)
                else: c = acc
                a.mfma(acc, ("a", aWF + (n % 2) * 12 + j * 4), ("a", aVF + mb * 4), c)
                for f in slots[mb * 3 + j]: f()
    def epi(mb):
        out = []
        yb = vT + (mb % 2) * 24
        for row in range(2):
            pk = yb + row * 12
            cst = "0.5" if row == 0 else "-0.5"
            for d in range(6):
                j, e = divmod(2 * d, 4)
                for h in range(2):
                    ra_, rb_ = accA(mb, j)[1] + e + h, accB(mb, j)[1] + e + h
                    out.append(lambda ra_=ra_, rb_=rb_, dst=pk + 6 + (d % 2) * 2 + h, cst=cst: vv(f"v_fma_f32 v{dst}, v{rb_}, {cst}, v{ra_}", [ra_, rb_], [dst]))
                out.append(lambda pk=pk, d=d: vv(f"v_cvt_pk_bf16_f32 v{pk+d}, v{pk+6+(d%2)*2}, v{pk+7+(d%2)*2}", [pk + 6 + (d % 2) * 2, pk + 7 + (d % 2) * 2], [pk + d]))
            out.append(lambda pk=pk, row=row: a.bstore(4, ("v", pk), vOUT + mb, sO, f"s{sOB0+row}"))
            out.append(lambda pk=pk, row=row: a.bstore(2, ("v", pk + 4), vOUT + mb, sO, f"s{sOB0+row}", 16))
        return out
    for mb in range(7):
        slots = {i: [] for i in range(NFV * 3)}
        for kk in range(NFV):
            i = mb * NFV + kk + 8
            if i < 7 * NFV: slots[kk * 3 + 2].append(lambda i=i: fin_vread(i))
        if mb > 0:
            ep = epi(mb - 1)
            for i, f in enumerate(ep): slots[3 + (i * 30) // len(ep)].append(f)
        for kk in range(NFV):
            for j in range(3):
                a.mfma(accB(mb, j), ("a", wfin(kk * 3 + j)), ("a", vring(mb * NFV + kk)), accB(mb, j))
                for f in slots[kk * 3 + j]: f()
    stamp("main end")
    for f in epi(6): f()
    if opt.get("stamp"):
        a.wait(vm0=True)
        stamp("end")
        a.raw(f"s_mov_b32 s{sWs+2}, 0x200000")
        a.raw(f"s_lshl_b32 s{sT2}, s2, 9")
        a.raw(f"s_lshl_b32 s{sT3}, s{sW}, 7")
        a.raw(f"s_add_u32 s{sT2}, s{sT2}, s{sT3}")
        a.raw(f"s_add_u32 s{sT2}, s{sT2}, 0x100000")
        a.raw(f"v_mov_b32 v1, 0")
        for k in range(nst[0]):
            a.raw(f"v_mov_b32 v2, s{76+k}")
            a.raw(f"buffer_store_dword v2, v1, s[{sWs}:{sWs+3}], s{sT2} offen offset:{4*k}")
            a.raw(f"v_mov_b32 v2, s{88+k}")
            a.raw(f"buffer_store_dword v2, v1, s[{sWs}:{sWs+3}], s{sT2} offen offset:{64+4*k}")
        a.raw("s_waitcnt vmcnt(0)")
    a.raw("Lend:")
    a.raw("s_endpgm")
    a.raw('.section .rodata,"a"'); a.raw(".p2align 6"); a.raw(f".amdhsa_kernel {NAME}")
    a.raw("  .amdhsa_next_free_vgpr 512"); a.raw("  .amdhsa_next_free_sgpr 102"); a.raw("  .amdhsa_accum_offset 256")
    a.raw("  .amdhsa_group_segment_fixed_size 0"); a.raw("  .amdhsa_kernarg_size 56"); a.raw("  .amdhsa_user_sgpr_count 2")
    a.raw("  .amdhsa_user_sgpr_kernarg_segment_ptr 1"); a.raw("  .amdhsa_system_sgpr_workgroup_id_x 1"); a.raw(".end_amdhsa_kernel")
    return a

if __name__ == "__main__":
    out = sys.argv[1] if len(sys.argv) > 1 else "standalone__detection_seg_fpn_lateral__vision.s"
    opt = {}
    for x in sys.argv[2:]:
        k, _, v = x.partition("="); opt[k] = int(v) if v else 1
    a = gen(opt)
    open(out, "w").write(a.text())
    print("lines", len(a.L), "waits", a.nwait, "nops", a.nnop, "est cycles", a.t)
```
